```python
import torch

def _softmax(x, axis=-1):
    return torch.softmax(x, dim=axis)
def _gelu(x):
    return torch.nn.functional.gelu(x, approximate="tanh")
def _silu(x):
    return torch.nn.functional.silu(x)
def _sigmoid(x):
    return torch.sigmoid(x)
def _layernorm(x, axis=-1, eps=1e-5):
    m = x.mean(dim=axis, keepdim=True)
    v = x.var(dim=axis, keepdim=True, unbiased=False)
    return (x - m) / torch.sqrt(v + eps)
def _scatter_add(tgt, idx, src, axis=0):
    return tgt.clone().index_add_(axis, idx, src)
def _segment_sum(src, seg, n):
    out = torch.zeros((n,) + src.shape[1:], dtype=src.dtype)
    return out.index_add_(0, seg, src)
def _pad(x, pw):
    flat = tuple(v for pair in reversed(pw) for v in pair)
    return torch.nn.functional.pad(x, flat)

kernel_name = 'standalone__linear_kernel_rfa__decode'

def setup_inputs():

    _w = (lambda a: (lambda t: t.to(torch.bfloat16) if t.is_floating_point() else t)(torch.as_tensor(a)))
    B, H, Sq, Sk, D, M = 2, 32, 1, 4096, 128, 64
    return {
        "q": _w((lambda *s: torch.randn(*s, dtype=torch.bfloat16) * 0.4)(B, H, Sq, D)),
        "k": _w((lambda *s: torch.randn(*s, dtype=torch.bfloat16) * 1.6)(B, H, Sk, D)),
        "v": _w((lambda *s: torch.randn(*s, dtype=torch.bfloat16) * 1.6)(B, H, Sk, D)),
        "omega": _w((lambda *s: torch.randn(*s, dtype=torch.bfloat16) * 1.6)(M, D)),
    }

def reference(q, k, v, omega):
    d = q.shape[-1]
    m = omega.shape[0]
    scale = float(d) ** -0.25
    qs = q * scale
    ks = k * scale
    q_proj = torch.einsum("bhsd,md->bhsm", qs, omega)
    k_proj = torch.einsum("bhsd,md->bhsm", ks, omega)
    q_sq = 0.5 * torch.einsum("bhsd,bhsd->bhs", qs, qs)[..., None]
    k_sq = 0.5 * torch.einsum("bhsd,bhsd->bhs", ks, ks)[..., None]
    inv_sqrt_m = float(m) ** -0.5
    phi_q = torch.exp(q_proj - q_sq) * inv_sqrt_m + 1e-6
    phi_k = torch.exp(k_proj - k_sq) * inv_sqrt_m + 1e-6
    kv = torch.einsum("bhsm,bhsd->bhmd", phi_k, v)
    z  = torch.einsum("bhsm->bhm", phi_k)
    num = torch.einsum("bhqm,bhmd->bhqd", phi_q, kv)
    den = torch.einsum("bhqm,bhm->bhq", phi_q, z)[..., None] + 1e-6
    return num / den
```

```python
import re
TRANS = ('v_exp_f32','v_log_f32','v_rcp_f32','v_rsq_f32','v_sqrt_f32')
def regs_of(tok):
    tok=tok.strip()
    tok=tok.lstrip('-')
    m=re.fullmatch(r'abs\((.*)\)',tok) or re.fullmatch(r'\|(.*)\|',tok)
    if m: tok=m.group(1)
    m=re.fullmatch(r'([vas])\[(\d+):(\d+)\]',tok)
    if m: return [(m.group(1),i) for i in range(int(m.group(2)),int(m.group(3))+1)]
    m=re.fullmatch(r'([vas])(\d+)',tok)
    if m: return [(m.group(1),int(m.group(2)))]
    if tok=='vcc': return [('s','vcc')]
    if tok=='exec': return [('s','exec')]
    if tok=='m0': return [('s','m0')]
    return []
class Ins:
    def __init__(s,text):
        s.text=text
        t=text.split(';')[0].strip()
        s.label = t.endswith(':')
        s.op = t.split()[0] if t else ''
        rest=t[len(s.op):].strip()
        ops=[];cur='';d=0
        for ch in rest:
            if ch in '[(': d+=1
            if ch in '])': d-=1
            if ch==',' and d==0: ops.append(cur);cur=''
            else: cur+=ch
        if cur.strip():
            ops.append(cur)
        s.mods=''
        if ops:
            p=ops[-1].strip().split(None,1)
            ops[-1]=p[0]
            if len(p)>1: s.mods=p[1]
        s.ops=[o.strip() for o in ops]
        s.w=[];s.r=[];s.srcc=[];s.ab=[]
        op=s.op
        s.mfma=op.startswith('v_mfma')
        s.valu=op.startswith('v_') and not s.mfma
        s.trans=any(op.startswith(x) for x in TRANS)
        s.salu=op.startswith('s_')
        s.ds=op.startswith('ds_')
        s.vmem=op.startswith('buffer_') or op.startswith('global_')
        s.dpp = ('_dpp' in op) or ('row_' in s.mods) or ('quad_perm' in s.mods)
        s.perm = op.startswith('v_permlane')
        R=lambda i: regs_of(s.ops[i]) if i<len(s.ops) else []
        if s.mfma:
            s.w=R(0); s.ab=R(1)+R(2); s.srcc=R(3); s.r=s.ab+s.srcc
            if '32x32' in op: s.passes=8 if '_f32_32x32x2_f32' not in op else 16
            elif 'x4_f32' in op: s.passes=8
            elif '4x4x4' in op: s.passes=2
            else: s.passes=4
            s.sgemm = op.endswith('_f32') and op.count('_f32')==2
        elif s.valu:
            s.w=R(0)
            k=1
            if op.startswith('v_cmp'): pass
            if op.startswith('v_add_co') or op.startswith('v_addc_co') or op.startswith('v_sub_co'):
                s.w+=R(1); k=2
            for i in range(k,len(s.ops)): s.r+=R(i)
            if op.startswith('v_fmac') or op.startswith('v_dot2c') or s.dpp or op.startswith('v_writelane'): s.r+=R(0)
            if s.perm: s.r=R(0)+R(1); s.w=R(0)+R(1)
            if op.startswith('v_cmpx'): s.w+=[('s','exec')]
        elif s.ds:
            if op.startswith('ds_read') or '_rtn' in op or 'permute' in op or 'swizzle' in op:
                s.w=R(0)
                for i in range(1,len(s.ops)): s.r+=R(i)
            else:
                for i in range(len(s.ops)): s.r+=R(i)
        elif s.vmem:
            lds = ' lds' in ' '+s.mods or 'load_lds' in op
            isload = '_load' in op
            ret = '_atomic' in op and 'sc0' in s.mods
            if lds:
                for i in range(len(s.ops)): s.r+=R(i)
                s.r+=[('s','m0')]
            elif isload:
                s.w=R(0)
                for i in range(1,len(s.ops)): s.r+=R(i)
            else:
                for i in range(len(s.ops)): s.r+=R(i)
                if ret: s.w=R(0)
            s.lds=lds
            s.widestore = ('store' in op) and ('x3' in op or 'x4' in op)
            if s.widestore:
                s.sdata = R(0) if op.startswith('buffer') else R(1)
        elif s.salu:
            if op.startswith('s_cmp') or op.startswith('s_cbranch') or op in ('s_nop','s_waitcnt','s_barrier','s_endpgm','s_branch','s_sleep','s_setprio'):
                for i in range(len(s.ops)): s.r+=R(i)
            else:
                s.w=R(0)
                for i in range(1,len(s.ops)): s.r+=R(i)
                if 'saveexec' in op: s.w+=[('s','exec')]
    def states(s):
        if s.label or not s.op or s.op.startswith('.'): return 0
        if s.op=='s_nop': return int(s.ops[0],0)+1
        return 1
def need(p,c):
    n=0
    W=set(p.w);
    cr=set(c.r); cw=set(c.w)
    vW={x for x in W if x[0] in 'va'}; sW={x for x in W if x[0]=='s'}
    if p.valu:
        if c.mfma and vW&cr: n=max(n,2)
        if c.perm and vW&cr: n=max(n,2)
        if c.dpp and vW&cr: n=max(n,2)
        if c.op.startswith('v_readlane') or c.op.startswith('v_readfirstlane'):
            if vW&cr: n=max(n,1)
            if c.op.startswith('v_readlane') and sW&cr: n=max(n,4)
        if p.trans and c.valu and not c.trans and vW&cr: n=max(n,1)
        if p.trans and (c.vmem or c.ds) and vW&cr: n=max(n,1)
        if sW&cr:
            if c.valu: n=max(n,2)
            if c.vmem: n=max(n,5)
            if c.salu: n=max(n,1)
        if ('s','exec') in W:
            if c.dpp: n=max(n,5)
            if c.mfma or c.perm or c.op.startswith('v_read'): n=max(n,4)
        if ('sdwa' in p.op or 'op_sel' in p.mods) and c.valu and vW&(cr|cw) and not p.op.startswith('v_pk_'): n=max(n,1)
        if p.op.startswith('v_dot') and (c.valu or c.mfma or c.vmem or c.ds) and vW&(cr|cw):
            if c.op==p.op and not (vW & set(regs_of(c.ops[1])+regs_of(c.ops[2]))): pass
            else: n=max(n,3)
    if p.salu:
        if ('s','m0') in W and c.vmem and getattr(c,'lds',False): n=max(n,1)
    if p.mfma:
        P={2:0,4:1,8:2,16:3}[p.passes]
        if c.mfma:
            if vW&set(c.ab): n=max(n,([4,6,10,18] if p.sgemm else [5,8,12,20])[P])
            if vW&set(c.srcc):
                if c.srcc==p.w and c.passes==p.passes and c.sgemm==p.sgemm: n=max(n,[2,0,0,0][P])
                elif p.sgemm: n=max(n,[2,4,8,16][P] if c.sgemm else 0)
                else: n=max(n,[4,6,10,18][P])
            elif vW&cw: n=max(n,[4,6,10,18][P])
        elif c.valu or c.vmem or c.ds:
            if vW&(cr|cw): n=max(n,([4,6,10,18] if p.sgemm else [5,8,12,20])[P])
            if c.valu and set(p.srcc)&cw and not p.sgemm: n=max(n,[1,3,7,15][P])
    if p.vmem and getattr(p,'widestore',False):
        if set(p.sdata)&cw: n=max(n,2)
    return n
class Asm:
    def __init__(s): s.l=[]
    def __call__(s,text):
        for line in text.split('\n'):
            if line.strip(): s.l.append(Ins(line.strip()))
    def fix(s, loops=()):
        out=[]
        def dist_ok(hist,c):
            req=0; d=0
            for p in reversed(hist):
                if d>=20: break
                n=need(p,c)
                if n>d: req=max(req,n-d)
                d+=p.states()
            return req
        nn=0
        for c in s.l:
            if c.states()>0:
                r=dist_ok(out,c)
                if r>0:
                    nn+=r
                    while r>0:
                        k=min(r,16); out.append(Ins(f's_nop {k-1}')); r-=k
            out.append(c)
        s.l=out
        labels={i.op[:-1]:k for k,i in enumerate(s.l) if i.label}
        for k,i in enumerate(s.l):
            if i.op.startswith('s_cbranch') or i.op=='s_branch':
                tgt=labels[i.ops[0]]
                hist=s.l[max(0,k-24):k+1]
                h=list(hist)
                d=0
                for c in s.l[tgt:tgt+30]:
                    if c.states()>0:
                        r=dist_ok(h,c)
                        if r>0: raise Exception(f'hazard across branch {i.text} -> {c.text} need {r}')
                    h.append(c)
                    if c.op in('s_branch','s_endpgm'): break
        return nn
    def text(s):
        return '\n'.join((i.text if i.label else '  '+i.text) for i in s.l)+'\n'
```

```python
import sys, struct
from asmlib import Asm
def f2u(x): return struct.unpack('<I',struct.pack('<f',x))[0]
SCALE=f2u(128.0**-0.25); LOG2E=f2u(1.4426950408889634)
HDR = open('standalone__linear_kernel_rfa__decode.s.ref').read().split('; Override')[0]
def interleave(main, extra, lead=0):
    out=[]; n=len(main); m=len(extra); k=0
    def put(x):
        if isinstance(x,(list,tuple)): out.extend(x)
        else: out.append(x)
    for i,x in enumerate(main):
        while k<m and (k+lead)*n <= i*m:
            put(extra[k]); k+=1
        put(x)
    for x in extra[k:]: put(x)
    return out
def gen(flags='nt', D=2, W=8, pk=False, il=0, stamps=False, elect_back=2, G=256, bar=1, skip=True, pbar=True,
        dbgst=False, spin=None, prio=None, omflags='', trace=False):
    a=Asm()
    PARTS=G//64
    KEYS=4096//PARTS
    T=KEYS//16//W
    assert T%D==0
    NIT=T//D
    elect_step=T-1-elect_back
    RING=D*8192
    LDS=16384+W*RING
    OM=0; KR=64; PJ=80; GR=96; PQ=100; C0=108; WD=112; WH=116; WA=120; ON=122; VF=124; VA=140
    KD=176; VD=180; KA=182; VR=186; TM=194; SQ=202; MK=204; LN=205; TK=206; PL=208; NV=224
    TA=220; TB=221
    def tr(kind):
        if not trace: return []
        return ['s_memrealtime s[62:63]', f's_add_u32 m0, s59, {kind%4}', 's_waitcnt lgkmcnt(0)', f'v_writelane_b32 v{TA if kind<4 else TB}, s62, m0']
    def trm(k):
        if not trace: return []
        return ['s_memrealtime s[62:63]', 's_waitcnt lgkmcnt(0)', f'v_writelane_b32 v{TB}, s62, {4*k+3}']
    if dbgst:
        ELEC=f'''s_lshr_b32 s36, s18, 1
s_lshl_b32 s36, s36, 2
s_add_u32 s36, s36, 128
v_mov_b32 v{PL}, s36
s_and_b32 s58, s18, 1
s_lshl_b32 s58, s58, 4
s_lshl_b32 s36, 1, s58
v_mov_b32 v{PL+1}, s36'''
    else:
        ELEC=f'''s_lshl_b32 s36, s18, 2
v_mov_b32 v{PL}, s36
v_mov_b32 v{PL+1}, 1'''
    a(f'''
s_cmp_ge_u32 s2, {G}
s_cbranch_scc1 L_end
s_load_dwordx8 s[4:11], s[0:1], 0
s_load_dwordx4 s[12:15], s[0:1], 32
s_load_dwordx2 s[16:17], s[0:1], 48''')
    if stamps or dbgst or trace: a('s_memrealtime s[60:61]')
    if dbgst: a('s_memtime s[78:79]')
    n_=TM+1; g_=TM+2; x_=TM+3
    a(f'''
v_lshrrev_b32 v{TM}, 6, v0
v_and_b32 v{LN}, 63, v0
v_readfirstlane_b32 s3, v{TM}
v_and_b32 v{n_}, 15, v{LN}
v_lshrrev_b32 v{g_}, 4, v{LN}
v_xor_b32 v{x_}, v{n_}, v{g_}
v_lshlrev_b32 v{x_}, 4, v{x_}
v_lshl_add_u32 v{KD}, v{g_}, 8, v{x_}
v_xor_b32 v{KD+1}, 64, v{KD}
v_xor_b32 v{KD+2}, 0x80, v{KD}
v_xor_b32 v{KD+3}, 0xc0, v{KD}
v_lshlrev_b32 v{TM+4}, 1, v{g_}
v_xor_b32 v{TM+4}, v{n_}, v{TM+4}
v_lshlrev_b32 v{TM+4}, 4, v{TM+4}
v_lshl_add_u32 v{VD}, v{g_}, 8, v{TM+4}
v_xor_b32 v{VD+1}, 0x80, v{VD}
''')
    lp=PARTS.bit_length()-1
    a(f's_lshr_b32 s18, s2, {lp}')
    a(f's_and_b32 s19, s2, {PARTS-1}')
    if il:
        a(f's_lshl_b32 s32, s18, 20')
        a(f's_mul_i32 s33, s19, {W*4096}')
        a(f's_add_u32 s32, s32, s33')
        STEP=W*4096*PARTS
    else:
        a(f's_mul_i32 s32, s2, {KEYS*256}')
        STEP=W*4096
    OMB=16384//W
    a(f'''
s_lshl_b32 s33, s3, 12
s_add_u32 s32, s32, s33
s_mul_i32 s35, s3, {RING}
s_add_u32 s35, s35, 16384
s_lshl_b32 s39, s18, 8
v_lshl_add_u32 v{TM+5}, v{g_}, 4, s39
s_mul_i32 s33, s3, {OMB}
s_mov_b32 m0, s33
s_mov_b32 s22, 0x4000000
s_mov_b32 s23, 0x20000
s_mov_b32 s26, 0x4000000
s_mov_b32 s27, 0x20000
s_mov_b32 s30, 16384
s_mov_b32 s31, 0x20000
''')
    if W==8:
        a(f'''
s_and_b32 s36, s3, 1
s_lshl_b32 s36, s36, 7
v_xor_b32 v{TM+6}, s36, v{KD}
v_xor_b32 v{TM+7}, s36, v{KD+1}
''')
        oma=[TM+6,TM+7]
    else: oma=[KD,KD+1,KD+2,KD+3]
    a(f'''
s_waitcnt lgkmcnt(0)
s_mov_b32 s28, s10
s_and_b32 s29, s11, 0xffff
''')
    if trace:
        a(f'v_mov_b32 v{TA}, 0'); a(f'v_mov_b32 v{TB}, 0'); a(f'v_writelane_b32 v{TB}, s60, 3'); a('s_mov_b32 s59, 0')
        for x in trm(1): a(x)
    for i,r in enumerate(oma):
        a(f'buffer_load_dwordx4 v{r}, s[28:31], s33 offen offset:{i*1024} {omflags} lds')
    for i in range(4):
        a(f'global_load_dwordx4 v[{KR+4*i}:{KR+4*i+3}], v{TM+5}, s[4:5] offset:{i*64}')
    a(f'''
s_mov_b32 s20, s6
s_and_b32 s21, s7, 0xffff
s_mov_b32 s24, s8
s_and_b32 s25, s9, 0xffff
s_mov_b32 s33, s32
''')
    if pbar: a('s_barrier')
    def dmaK(slot):
        r=[[f's_add_u32 m0, s35, {slot*4096}',f's_nop 0']]
        for i in range(4): r.append(f'buffer_load_dwordx4 v{KD+i}, s[20:23], s32 offen offset:{i*1024} {flags} lds')
        r[1]=r[0]+[r[1]]; r=r[1:]
        r[-1]=[r[-1],f's_add_u32 s32, s32, {STEP}']
        return r
    def dmaV(slot):
        r=[[f's_add_u32 m0, s35, {D*4096+slot*4096}',f's_nop 0']]
        for i in range(4): r.append(f'buffer_load_dwordx4 v{VD+(i&1)}, s[24:27], s33 offen offset:{i*1024} {flags} lds')
        r[1]=r[0]+[r[1]]; r=r[1:]
        r[-1]=[r[-1],f's_add_u32 s33, s33, {STEP}']
        return r
    def emit(seq):
        for x in seq:
            if isinstance(x,(list,tuple)): emit(x)
            else: a(x)
    emit(dmaK(0))
    a(f'''
s_lshl_b32 s36, s2, 10
s_add_u32 s16, s16, s36
s_addc_u32 s17, s17, 0
v_lshlrev_b32 v{TM+6}, 4, v{LN}
v_mov_b32 v{PL}, -1
v_mov_b32 v{PL+1}, -1
v_mov_b32 v{PL+2}, -1
v_mov_b32 v{PL+3}, -1
s_cmp_lg_u32 s3, 0
s_cbranch_scc1 L_noclr
global_store_dwordx4 v{TM+6}, v[{PL}:{PL+3}], s[16:17] sc1
L_noclr:
''')
    for t in range(1,D):
        emit(dmaK(t)); emit(dmaV(t-1))
    emit(trm(2))
    NPRO=8*D-4
    a(f'''
v_lshl_add_u32 v{KA}, v{n_}, 8, v{x_}
v_xor_b32 v{KA+1}, 64, v{KA}
v_xor_b32 v{KA+2}, 0x80, v{KA}
v_xor_b32 v{KA+3}, 0xc0, v{KA}
v_lshrrev_b32 v{TM+4}, 2, v{LN}
v_and_b32 v{TM+5}, 7, v{TM+4}
v_lshlrev_b32 v{TM+5}, 5, v{TM+5}
v_lshl_add_u32 v{TM+5}, v{TM+4}, 8, v{TM+5}
v_and_b32 v{TM+4}, 3, v{LN}
v_lshl_add_u32 v{TM+5}, v{TM+4}, 3, v{TM+5}
s_add_u32 s36, s35, {D*4096}
''')
    for b in range(8):
        a(f'v_xor_b32 v{VR+b}, {b*32}, v{TM+5}')
        a(f'v_add_u32 v{VR+b}, s36, v{VR+b}')
    a(f'v_lshlrev_b32 v{TM+4}, 2, v{g_}')
    a(f'v_sub_u32 v{TM+4}, v{n_}, v{TM+4}')
    for r in range(4): a(f'v_cmp_eq_u32 s[{40+2*r}:{41+2*r}], {r}, v{TM+4}')
    a(f'''
v_and_b32 v{TM+4}, 1, v{LN}
v_cvt_f32_u32 v{MK}, v{TM+4}
v_sub_f32 v{MK}, 0, v{MK}
v_mov_b32 v{ON}, 0x3f803f80
v_mov_b32 v{ON+1}, 0x3f803f80
s_mov_b32 s48, {SCALE}
s_mov_b32 s49, {SCALE}
s_mov_b32 s50, {LOG2E}
s_mov_b32 s51, {LOG2E}
s_mov_b32 s52, 0xffff0000
''')
    for i in range(36): a(f'v_mov_b32 v{VA+i}, 0')
    for i in range(4): a(f'v_mov_b32 v{WD+i}, 0')
    a(f'v_lshl_add_u32 v{TM+4}, v{LN}, 4, s36')
    for i in range(4): a(f'ds_write_b128 v{TM+4}, v[{VA}:{VA+3}] offset:{(D-1)*4096+i*1024}')
    a(f's_waitcnt vmcnt({NPRO})')
    a('s_barrier')
    if dbgst: a('s_memrealtime s[64:65]')
    emit(trm(3))
    for i in range(4):
        for t in range(4):
            a(f'ds_read_b128 v[{OM+t*16+i*4}:{OM+t*16+i*4+3}], v{KA+i} offset:{t*4096}')
    for i in range(4): a(f'v_add_u32 v{KA+i}, s35, v{KA+i}')
    def scale(i):
        r=[]
        for j in range(4):
            x=KR+4*i+j; t=TM+2*(j&1)
            r.append(f'v_lshlrev_b32 v{t}, 16, v{x}')
            r.append(f'v_and_b32 v{t+1}, s52, v{x}')
            if pk: r.append(f'v_pk_mul_f32 v[{t}:{t+1}], v[{t}:{t+1}], s[48:49]')
            else:
                r.append(f'v_mul_f32 v{t}, s48, v{t}'); r.append(f'v_mul_f32 v{t+1}, s48, v{t+1}')
            r.append(f'v_cvt_pk_bf16_f32 v{x}, v{t}, v{t+1}')
        return r
    def mf_frag(i):
        kb=f'v[{KR+4*i}:{KR+4*i+3}]'
        r=[f'v_mfma_f32_16x16x32_bf16 v[{GR}:{GR+3}], {kb}, {kb}, '+('0' if i==0 else f'v[{GR}:{GR+3}]')]
        for t in range(4):
            r.append(f'v_mfma_f32_16x16x32_bf16 v[{PJ+4*t}:{PJ+4*t+3}], v[{OM+t*16+i*4}:{OM+t*16+i*4+3}], {kb}, '+('0' if i==0 else f'v[{PJ+4*t}:{PJ+4*t+3}]'))
        return r
    def rnd(tiles): return [f'v_cvt_pk_bf16_f32 v{x}, 0, v{x}' for t in tiles for x in range(PJ+4*t,PJ+4*t+4)]
    def post2(tiles):
        r=[]
        regs=[PJ+4*t+j for t in tiles for j in range(4)]
        if pk:
            for x in regs[::2]: r.append(f'v_pk_add_f32 v[{x}:{x+1}], v[{x}:{x+1}], v[{SQ}:{SQ+1}]')
        else:
            for x in regs: r.append(f'v_add_f32 v{x}, v{x}, v{SQ}')
        for x in regs: r.append(f'v_cvt_pk_bf16_f32 v{x}, 0, v{x}')
        if pk:
            for x in regs[::2]: r.append(f'v_pk_mul_f32 v[{x}:{x+1}], v[{x}:{x+1}], s[50:51]')
        else:
            for x in regs: r.append(f'v_mul_f32 v{x}, s50, v{x}')
        for x in regs: r.append(f'v_exp_f32 v{x}, v{x}')
        return r
    emit(scale(0)+scale(1)+scale(2)+scale(3))
    for i in range(4):
        a(f's_waitcnt lgkmcnt({12-4*i if not dbgst else 0})')
        emit(mf_frag(i))
    a(f'v_cvt_pk_bf16_f32 v{SQ}, 0, v{GR}')
    a(f'v_mul_f32 v{SQ}, -0.5, v{SQ}')
    if pk: a(f'v_mov_b32 v{SQ+1}, v{SQ}')
    a(f's_waitcnt vmcnt({NPRO-4})')
    emit(trm(4))
    for i in range(4): a(f'ds_read_b128 v[{KR+4*i}:{KR+4*i+3}], v{KA+i} offset:0')
    emit(rnd(range(4))+post2(range(4)))
    a(f's_mov_b32 s53, {f2u(1e-6)}')
    a(f'v_mov_b32 v{TM}, s53')
    a(f's_mov_b32 s54, {f2u(0.125)}')
    for x in range(PJ,PJ+16): a(f'v_cvt_pk_bf16_f32 v{x}, 0, v{x}')
    for x in range(PJ,PJ+16): a(f'v_fma_f32 v{x}, v{x}, s54, v{TM}')
    for j in range(8): a(f'v_cvt_pk_bf16_f32 v{PQ+j}, v{PJ+2*j}, v{PJ+2*j+1}')
    for j in range(2,6): a(f'v_mov_b32 v{TM+j}, v{ON}')
    a(f'v_mfma_f32_16x16x32_bf16 v[{C0}:{C0+3}], v[{TM+2}:{TM+5}], v[{PQ}:{PQ+3}], 0')
    a(f'v_mfma_f32_16x16x32_bf16 v[{C0}:{C0+3}], v[{TM+2}:{TM+5}], v[{PQ+4}:{PQ+7}], v[{C0}:{C0+3}]')
    a(f's_mov_b32 s55, {f2u(8e-6)}')
    a('s_mov_b32 s34, 0')
    a('s_mov_b64 vcc, 0')
    for r in range(4): a(f'v_mul_f32 v{C0+r}, s55, v{C0+r}')
    def wfin():
        r=[f'v_cvt_pk_bf16_f32 v{WH+k}, 0, v{WD+k}' for k in range(4)]
        r+=[f'v_fma_f32 v{WH+k}, v{WH+k}, v{MK}, v{WD+k}' for k in range(4)]
        r+=[f'v_cvt_pk_bf16_f32 v{WA}, v{WH}, v{WH+1}', f'v_cvt_pk_bf16_f32 v{WA+1}, v{WH+2}, v{WH+3}']
        return r
    def vreads(slot): return [f'ds_read_b64_tr_b16 v[{VF+2*b}:{VF+2*b+1}], v{VR+b} offset:{slot*4096}' for b in range(8)]
    def vmf():
        r=[f'v_mfma_f32_16x16x16_bf16 v[{VA+32}:{VA+35}], v[{WA}:{WA+1}], v[{ON}:{ON+1}], v[{VA+32}:{VA+35}]']
        for b in range(8):
            r.append([f's_waitcnt lgkmcnt({7-b})',f'v_mfma_f32_16x16x16_bf16 v[{VA+4*b}:{VA+4*b+3}], v[{WA}:{WA+1}], v[{VF+2*b}:{VF+2*b+1}], v[{VA+4*b}:{VA+4*b+3}]'])
        return r
    NW=8*D-4
    lab=[0]
    def wait_vm(nlast):
        r=[f's_waitcnt vmcnt({NW})']
        if skip and nlast<NW:
            lab[0]+=1
            r+=[f's_cbranch_vccz L_w{lab[0]}', f's_waitcnt vmcnt({nlast})', f'L_w{lab[0]}:']
        return r
    def guarded(seq):
        lab[0]+=1
        return [[f's_cbranch_vccnz L_g{lab[0]}']+[y for x in seq for y in (x if isinstance(x,list) else [x])]+[f'L_g{lab[0]}:']]
    a('L_loop:')
    for s in range(D):
        if s==0:
            a(f's_cmp_eq_u32 s34, {NIT-1}')
            if skip: a('s_cselect_b64 vcc, -1, 0')
            else: a(f's_cselect_b32 s22, 0, s22')
            if dbgst:
                a('s_mov_b32 s76, s74'); a('s_mov_b32 s74, s72'); a('s_mov_b32 s72, s70'); a('s_memrealtime s[70:71]')
        if s==1 and not skip:
            a(f's_mov_b32 s26, s22')
        if prio is not None:
            pass
        if elect_step%D==s:
            a(f's_cmp_eq_u32 s34, {elect_step//D}')
            a(f's_cbranch_scc0 L_noel')
            a(f's_cmp_eq_u32 s3, 0')
            a(f's_cbranch_scc0 L_noel')
            a(ELEC)
            a(f'''
s_mov_b64 exec, 1
global_atomic_add v{TK}, v{PL}, v{PL+1}, s[14:15] sc0 sc1
s_mov_b64 exec, -1
L_noel:''')
        a('s_waitcnt lgkmcnt(0)')
        emit(tr(0))
        dk=dmaK(s)
        if skip:
            emit(guarded(dk)); dk=[[],[],[],[]]
        emit(tr(1))
        emit(interleave(scale(0), dk[:2]))
        emit(interleave(scale(1)+wfin(), mf_frag(0)+dk[2:3],lead=0.5))
        emit(interleave(scale(2), mf_frag(1)+dk[3:4],lead=0.5))
        emit(interleave(scale(3), mf_frag(2),lead=0.5))
        rem=D-1-s
        emit(tr(2))
        emit(wait_vm(8*rem+(4 if s>=1 else 0)))
        emit(tr(3))
        emit(interleave(vreads((s-1)%D), mf_frag(3)))
        ks=[f'v_cndmask_b32 v{SQ}, 0, v{GR}, s[40:41]']
        for r in range(1,4): ks.append(f'v_cndmask_b32 v{SQ}, v{SQ}, v{GR+r}, s[{40+2*r}:{41+2*r}]')
        ks.append(f'v_mov_b32 v{SQ+1}, v{SQ}')
        r1=rnd(range(4))
        ks+=r1[0:2]
        ks+=[f'v_permlane32_swap_b32 v{SQ}, v{SQ+1}', f'v_add_f32 v{SQ}, v{SQ}, v{SQ+1}', f'v_mov_b32 v{SQ+1}, v{SQ}']
        ks+=r1[2:4]
        ks+=[f'v_permlane16_swap_b32 v{SQ}, v{SQ+1}', f'v_add_f32 v{SQ}, v{SQ}, v{SQ+1}', f'v_cvt_pk_bf16_f32 v{SQ}, 0, v{SQ}', f'v_mul_f32 v{SQ}, -0.5, v{SQ}']
        if pk: ks.append(f'v_mov_b32 v{SQ+1}, v{SQ}')
        ks+=r1[4:]
        p0=post2((0,1)); p1=post2((2,3))
        emit(interleave(ks+p0[:8], vmf(), lead=0.7))
        dv=dmaV((s-1)%D)
        emit(tr(4))
        if skip and s>=1:
            emit(guarded(dv)); dv=[]
        emit(interleave(p0[8:]+p1[:2], dv))
        emit(tr(5))
        if bar and (s%bar==bar-1): a('s_barrier')
        for j in range(4): a(f'v_cvt_pk_bf16_f32 v{PJ+j}, v{PJ+2*j}, v{PJ+2*j+1}')
        emit(p1[2:4])
        a(f'v_mfma_f32_16x16x32_bf16 v[{WD}:{WD+3}], v[{PJ}:{PJ+3}], v[{PQ}:{PQ+3}], v[{C0}:{C0+3}]')
        h=len(p1)-8
        emit(p1[4:h])
        kr=[f'ds_read_b128 v[{KR+4*i}:{KR+4*i+3}], v{KA+i} offset:{((s+1)%D)*4096}' for i in range(4)]
        emit(tr(6))
        if trace: a('s_add_u32 s59, s59, 4')
        if s<D-1 or not skip:
            emit(wait_vm(8*rem))
            emit(interleave(p1[h:], kr))
        else:
            emit(guarded([f's_waitcnt vmcnt({NW})']+kr))
            emit(p1[h:])
        a('s_nop 0')
        for j in range(4): a(f'v_cvt_pk_bf16_f32 v{PJ+8+j}, v{PJ+8+2*j}, v{PJ+8+2*j+1}')
        if s==D-1:
            a(f's_add_u32 s34, s34, 1')
            a(f's_cmp_lt_u32 s34, {NIT}')
        a(f'v_mfma_f32_16x16x32_bf16 v[{WD}:{WD+3}], v[{PJ+8}:{PJ+11}], v[{PQ+4}:{PQ+7}], v[{WD}:{WD+3}]')
    a('s_cbranch_scc1 L_loop')
    NP=PARTS-1
    if dbgst: a('s_memrealtime s[66:67]'); a('s_waitcnt lgkmcnt(0)')
    emit(trm(5))
    a(f'''
v_lshlrev_b32 v{TM+6}, 4, v{LN}
s_waitcnt vmcnt(0) lgkmcnt(0)
''')
    emit(trm(6))
    emit(vreads(D-1))
    a(f'''
s_mov_b32 s37, 0
s_mov_b32 s38, 0
s_cmp_lg_u32 s3, 0
s_cbranch_scc1 L_red
v_readfirstlane_b32 s37, v{TK}
''')
    if dbgst: a('s_lshr_b32 s37, s37, s58\ns_and_b32 s37, s37, 0xffff')
    a(f'''
s_cmp_lg_u32 s37, {NP}
s_cbranch_scc1 L_red
s_lshl_b32 s36, s19, 10
s_sub_u32 s56, s16, s36
s_subb_u32 s57, s17, 0''')
    for k in range(1,PARTS):
        a(f's_add_u32 s36, s19, {k}'); a(f's_and_b32 s36, s36, {PARTS-1}'); a('s_lshl_b32 s36, s36, 10')
        a(f'v_add_u32 v{KR+k}, s36, v{TM+6}')
    PB=OM
    for k in range(1,PARTS):
        a(f'global_load_dwordx4 v[{PB+4*k}:{PB+4*k+3}], v{KR+k}, s[56:57] sc1')
    a('L_red:')
    emit(wfin())
    emit(vmf())
    a(f'v_lshrrev_b32 v{g_}, 4, v{LN}')
    a(f'v_add_u32 v{TM+1}, s35, v{TM+6}')
    for g in range(1,4): a(f'v_cmp_eq_u32 s[{40+2*g}:{41+2*g}], {g}, v{g_}')
    X=PL
    a(f'v_add_f32 v{X+2}, v{VA+32}, v{VA+33}')
    for b in range(8): a(f'v_add_f32 v{VA+4*b}, v{VA+4*b}, v{VA+4*b+1}')
    for g in range(1,4):
        a(f'v_cndmask_b32 v{X}, v{VA if g==1 else X}, v{VA+8*g}, s[{40+2*g}:{41+2*g}]')
        a(f'v_cndmask_b32 v{X+1}, v{VA+4 if g==1 else X+1}, v{VA+8*g+4}, s[{40+2*g}:{41+2*g}]')
    a(f'''
ds_write_b96 v{TM+1}, v[{X}:{X+2}]
v_add_u32 v{TM+3}, 0x10000, v{TM+1}
s_waitcnt lgkmcnt(0)''')
    emit(trm(7))
    a('s_barrier')
    emit(trm(8))
    a(f'''
s_cmp_lg_u32 s3, 0
s_cbranch_scc1 L_fin
''')
    for w in range(1,W):
        off=w*RING
        a(f'ds_read_b96 v[{VA+4*w}:{VA+4*w+2}], v{TM+1 if off<65536 else TM+3} offset:{off%65536}')
    for w in range(1,W):
        a(f's_waitcnt lgkmcnt({W-1-w})')
        for j in range(3): a(f'v_add_f32 v{X+j}, v{X+j}, v{VA+4*w+j}')
    a(f'''
s_mov_b32 s38, 0
s_cmp_eq_u32 s37, {NP}
s_cbranch_scc1 L_comb
v_min_u32 v{X}, -2, v{X}
v_min_u32 v{X+1}, -2, v{X+1}
v_min_u32 v{X+2}, -2, v{X+2}
v_mov_b32 v{X+3}, 0
global_store_dwordx4 v{TM+6}, v[{X}:{X+3}], s[16:17] sc1
s_branch L_fin
L_comb:
s_waitcnt vmcnt(0)
''')
    a(f'v_max3_u32 v{TM}, v{PB+4}, v{PB+5}, v{PB+6}')
    for k in range(2,PARTS):
        a(f'v_max3_u32 v{TM}, v{TM}, v{PB+4*k}, v{PB+4*k+1}')
        a(f'v_max_u32 v{TM}, v{TM}, v{PB+4*k+2}')
    a(f'''
v_cmp_eq_u32 vcc, -1, v{TM}
s_nop 1
s_cmp_eq_u64 vcc, 0
s_cbranch_scc1 L_ok
''')
    for k in range(1,PARTS):
        a(f'global_load_dwordx4 v[{PB+4*k}:{PB+4*k+3}], v{KR+k}, s[56:57] sc1')
    a('s_add_u32 s38, s38, 1')
    a('s_cmp_lt_u32 s38, 0x40000')
    a('s_cbranch_scc1 L_comb')
    a('s_waitcnt vmcnt(0)')
    a('L_ok:')
    for k in range(1,PARTS):
        for j in range(3): a(f'v_add_f32 v{X+j}, v{X+j}, v{PB+4*k+j}')
    a(f'''
v_add_f32 v{X+2}, s55, v{X+2}
v_rcp_f32 v{X+2}, v{X+2}
v_and_b32 v{TM}, 15, v{LN}
v_lshl_add_u32 v{TM}, v{g_}, 5, v{TM}
v_lshl_add_u32 v{TM}, v{TM}, 1, s39
v_mul_f32 v{X}, v{X}, v{X+2}
v_mul_f32 v{X+1}, v{X+1}, v{X+2}
v_cvt_pk_bf16_f32 v{X}, v{X}, v{X+1}
global_store_short v{TM}, v{X}, s[12:13]
global_store_short_d16_hi v{TM}, v{X}, s[12:13] offset:32
L_fin:
''')
    if trace:
        emit(trm(9))
        a('s_waitcnt vmcnt(0)')
        emit(trm(10))
        a(f'''
v_writelane_b32 v{TB}, s37, {4*11+3}
v_writelane_b32 v{TB}, s38, {4*12+3}
s_load_dwordx2 s[16:17], s[0:1], 48
s_mul_i32 s36, s2, {W}
s_add_u32 s36, s36, s3
s_lshl_b32 s36, s36, 9
s_add_u32 s36, s36, 0x9000000
v_lshl_add_u32 v{TM}, v{LN}, 2, s36
s_waitcnt lgkmcnt(0)
global_store_dword v{TM}, v{TA}, s[16:17]
global_store_dword v{TM}, v{TB}, s[16:17] offset:256
''')
    if stamps:
        a(f'''
s_waitcnt vmcnt(0)
s_memrealtime s[62:63]
s_load_dwordx2 s[16:17], s[0:1], 48
s_mul_i32 s36, s2, {W}
s_add_u32 s36, s36, s3
s_lshl_b32 s36, s36, 4
s_add_u32 s36, s36, 0x8000000
s_waitcnt lgkmcnt(0)
v_mov_b32 v{PL}, s60
v_mov_b32 v{PL+1}, s61
v_mov_b32 v{PL+2}, s62
v_mov_b32 v{PL+3}, s63
v_mov_b32 v{TM}, s36
s_mov_b64 exec, 1
global_store_dwordx4 v{TM}, v[{PL}:{PL+3}], s[16:17]
''')
    if dbgst:
        a(f'''
s_cmp_lg_u32 s3, 0
s_cbranch_scc1 L_end
s_waitcnt vmcnt(0)
s_memrealtime s[62:63]
s_memtime s[80:81]
s_waitcnt lgkmcnt(0)
v_mov_b32 v{PL}, 0
s_not_b32 s36, s60
v_writelane_b32 v{PL}, s36, 0
v_writelane_b32 v{PL}, s62, 1
v_writelane_b32 v{PL}, s60, 2
s_not_b32 s36, s62
v_writelane_b32 v{PL}, s36, 3''')
        for k,(x,y) in enumerate([(64,60),(76,60),(74,60),(72,60),(70,60),(66,60),(62,60),(80,78),(60,64),(60,76),(60,74),(60,66)]):
            a(f's_sub_u32 s36, s{x}, s{y}'); a(f'v_writelane_b32 v{PL}, s36, {4+k}')
        a(f'''
v_lshlrev_b32 v{TM}, 2, v{LN}
s_mov_b64 exec, 0xffff
global_atomic_umax v{TM}, v{PL}, s[14:15] sc1
''')
        if spin is not None:
            a(f'v_readlane_b32 s36, v{PL}, {spin[0]}')
            a(f's_lshr_b32 s36, s36, {spin[1]}')
            if spin[0]==0: a('s_mov_b32 s36, 0')
            a('s_add_u32 s36, s36, 5000')
            a('L_spin:')
            a('s_memrealtime s[62:63]')
            a('s_waitcnt lgkmcnt(0)')
            a('s_sub_u32 s37, s62, s60')
            a('s_cmp_lt_u32 s37, s36')
            a('s_cbranch_scc1 L_spin')
    a('L_end:')
    a('s_endpgm')
    nn=a.fix()
    txt = HDR + f'; @launch grid=({G},1,1) block=({W*64},1,1) lds={LDS}\n'
    txt += '''.amdgcn_target "amdgcn-amd-amdhsa--gfx950"
.text
.globl standalone__linear_kernel_rfa__decode_kernel
.p2align 8
.type standalone__linear_kernel_rfa__decode_kernel,@function
standalone__linear_kernel_rfa__decode_kernel:
'''
    txt += a.text()
    txt += f'''.section .rodata,"a"
.p2align 6
.amdhsa_kernel standalone__linear_kernel_rfa__decode_kernel
  .amdhsa_next_free_vgpr {NV}
  .amdhsa_next_free_sgpr 96
  .amdhsa_accum_offset {NV}
  .amdhsa_group_segment_fixed_size 0
  .amdhsa_kernarg_size 56
  .amdhsa_user_sgpr_count 2
  .amdhsa_user_sgpr_kernarg_segment_ptr 1
  .amdhsa_system_sgpr_workgroup_id_x 1
.end_amdhsa_kernel
'''
    return txt
if __name__=='__main__':
    cfgs = eval(open(sys.argv[1]).read())
    for n,c in cfgs.items():
        open(n+'.s','w').write(gen(**c))
    print(' '.join(n+'.s' for n in cfgs))
```

```python
import sys, struct
from asmlib import Asm
from gen2 import interleave, f2u, SCALE, LOG2E, HDR
def gen(flags='nt', n=10, L=1, il=0, stamps=False, trace=False, elect_back=2, G=256, lprio=3, omflags='', U=1, spin=False, safe=True, pollfirst=True, nocomp=0, perm='i0 i1 w0 w1 l0 l1 g3 g4 t0 t1 t2 t3 g0 g1 g2 g5 g6 g7'):
    a=Asm()
    C=4; D=4; W=C+1
    PARTS=G//64
    KEYS=4096//PARTS
    T=KEYS//16//C
    RING=D*8192
    OMO=C*RING
    FLG=OMO+16384
    LDS=FLG+64
    OM=0; KR=64; PJ=80; GR=96; PQ=100; C0=108; WD=112; WH=116; WA=120; ON=122; VF=124; VA=140
    KD=176; VD=180; KA=182; VR=186; TM=194; SQ=202; MK=204; LN=205; TK=206; FA=207; PL=208; FV=212; PG=213; WN=214; PA=216
    TA=220; TB=221; NV=224
    def emit(seq):
        for x in seq:
            if isinstance(x,(list,tuple)): emit(x)
            else: a(x)
    def tr(kind):
        if not trace: return []
        return ['s_memrealtime s[62:63]', f's_add_u32 m0, s59, {kind%4}', 's_waitcnt lgkmcnt(0)', f'v_writelane_b32 v{TA if kind<4 else TB}, s62, m0']
    def trm(k):
        if not trace: return []
        return ['s_memrealtime s[62:63]', 's_waitcnt lgkmcnt(0)', f'v_writelane_b32 v{TB}, s62, {4*k+3}']
    a(f'''
s_cmp_ge_u32 s2, {G}
s_cbranch_scc1 L_end
s_load_dwordx8 s[4:11], s[0:1], 0
s_load_dwordx4 s[12:15], s[0:1], 32
s_load_dwordx2 s[16:17], s[0:1], 48''')
    if stamps or trace or spin: a('s_memrealtime s[60:61]')
    n_=TM+1; g_=TM+2; x_=TM+3
    lp=PARTS.bit_length()-1
    a(f'''
v_lshrrev_b32 v{TM}, 6, v0
v_and_b32 v{LN}, 63, v0
v_readfirstlane_b32 s3, v{TM}
v_and_b32 v{n_}, 15, v{LN}
v_lshrrev_b32 v{g_}, 4, v{LN}
v_xor_b32 v{x_}, v{n_}, v{g_}
v_lshlrev_b32 v{x_}, 4, v{x_}
v_mov_b32 v{FA}, {FLG}
s_mov_b32 s55, {f2u(8e-6)}
''')
    pm=[p.split('^') for p in perm.split()]
    if len(pm)==14: pm=[['l0'],['l1'],['i0'],['i1']]+pm
    assert len(pm)==18
    hb=[p[0] for p in pm[12:]]
    assert all(len(p)==1 and p[0][0]=='g' for p in pm[12:])
    hbits=[int(x[1:]) for x in hb]
    pbits=[k for k in range(8) if k not in hbits]
    def gather(dst,bits):
        runs=[]; i=0
        while i<len(bits):
            j=i
            while j+1<len(bits) and bits[j+1]==bits[j]+1: j+=1
            runs.append((i,bits[i],j-i+1)); i=j+1
        for k,(pos,b,ln) in enumerate(runs):
            t=dst if k==0 else 's36'
            a(f's_bfe_u32 {t}, s2, {b|(ln<<16)}')
            if pos: a(f's_lshl_b32 {t}, {t}, {pos}')
            if k: a(f's_or_b32 {dst}, {dst}, s36')
    gather('s18',hbits)
    a('s_lshl_b32 s39, s18, 8')
    def msk(name):
        r=0
        for b,p in enumerate(pm):
            if name in p: r|=1<<(8+b)
        return r
    def foff(c,i): return (msk('w0') if c&1 else 0)^(msk('w1') if c&2 else 0)^(msk('i0') if i&1 else 0)^(msk('i1') if i&2 else 0)
    p0=msk('l0').bit_length()-1; p1=msk('l1').bit_length()-1
    assert p1==p0+1
    tm=[msk(f't{k}') for k in range(4)]
    tlin = all(tm[k]==tm[0]<<k for k in range(4)) and bin(tm[0]).count('1')==1 and all(len(p)==1 for p in pm if any(x[0]=='t' for x in p))

    guard = ['s_sub_u32 s58, s58, 1', 's_cbranch_scc1 L_end'] if safe else []
    if safe: a('s_mov_b32 s58, 0x100000')
    if trace:
        a(f'v_mov_b32 v{TA}, 0'); a(f'v_mov_b32 v{TB}, 0'); a('s_mov_b32 s59, 0'); a('s_mov_b32 s37, 0'); a('s_mov_b32 s38, 0')
    a(f'''
s_cmp_lt_u32 s3, {C}
s_cbranch_scc1 L_cons
''')
    if lprio: a(f's_setprio {lprio}')
    a(f'''
v_mov_b32 v{FV}, 0
v_lshl_add_u32 v{TM+4}, v{n_}, 2, v{FA}
ds_write_b32 v{TM+4}, v{FV}
v_lshl_add_u32 v{KA}, v{g_}, 8, v{x_}
v_xor_b32 v{KA+1}, 64, v{KA}
v_xor_b32 v{KA+2}, 0x80, v{KA}
v_xor_b32 v{KA+3}, 0xc0, v{KA}
v_lshl_add_u32 v{KD}, v{g_}, {p0}, v{x_}
v_xor_b32 v{KD+1}, 64, v{KD}
v_xor_b32 v{KD+2}, 0x80, v{KD}
v_xor_b32 v{KD+3}, 0xc0, v{KD}
v_lshlrev_b32 v{TM+4}, 1, v{g_}
v_xor_b32 v{TM+4}, v{n_}, v{TM+4}
v_lshlrev_b32 v{TM+4}, 4, v{TM+4}
v_lshl_add_u32 v{VD}, v{g_}, {p0}, v{TM+4}
v_xor_b32 v{VD+1}, 0x80, v{VD}
''')
    gather('s19',pbits)
    a('s_lshl_b32 s32, s18, 20')
    for k in range(8):
        mk=msk(f'g{k}')&0xfffff
        if mk:
            a(f's_bitcmp1_b32 s2, {k}'); a(f's_cselect_b32 s36, {mk}, 0'); a('s_xor_b32 s32, s32, s36')
    a('s_mov_b32 s43, s32')
    a('s_mov_b32 s44, 0')
    a(f'''
s_mov_b32 s33, s32
s_mov_b32 s42, s32
s_mov_b32 s22, 0x4000000
s_mov_b32 s23, 0x20000
s_mov_b32 s26, 0x4000000
s_mov_b32 s27, 0x20000
s_mov_b32 s30, 16384
s_mov_b32 s31, 0x20000
s_mov_b32 s35, 0
s_mov_b32 s36, 0
s_mov_b32 m0, {OMO}
v_lshlrev_b32 v{TM+6}, 4, v{LN}
v_mov_b32 v{PL}, -1
v_mov_b32 v{PL+1}, -1
v_mov_b32 v{PL+2}, -1
v_mov_b32 v{PL+3}, -1
s_waitcnt lgkmcnt(0)
s_barrier
s_mov_b32 s28, s10
s_and_b32 s29, s11, 0xffff
s_mov_b32 s20, s6
s_and_b32 s21, s7, 0xffff
s_mov_b32 s24, s8
s_and_b32 s25, s9, 0xffff
''')
    if trace: a(f'v_writelane_b32 v{TB}, s60, 3')
    emit(trm(1))
    gi=[0]
    def publish(static=True):
        if static:
            gi[0]+=1
            if gi[0]-n<=0: return []
        return [f's_waitcnt vmcnt({4*n})', f'v_add_u32 v{FV}, 1, v{FV}', f'ds_write_b32 v{FA}, v{FV}']
    for t in range(4):
        if t or trace:
            a(f's_mov_b32 m0, {OMO+t*4096}'); a(f's_mov_b32 s36, {t*4096}')
        for i in range(4): a(f'buffer_load_dwordx4 v{KA+i}, s[28:31], s36 offen offset:{i*1024} {omflags} lds')
        emit(publish())
    def grpK(c,static):
        r=[]
        for i in range(4): r+=[f's_add_u32 m0, s35, {c*RING+i*1024}',f's_xor_b32 s40, s32, {foff(c,i)}', f'buffer_load_dwordx4 v{KD+i}, s[20:23], s40 offen {flags} lds']
        return r+publish(static)
    def grpV(c,static):
        r=[]
        for i in range(4): r+=[f's_add_u32 m0, s35, {c*RING+4096+i*1024}',f's_xor_b32 s41, s33, {foff(c,i)}', f'buffer_load_dwordx4 v{VD+(i&1)}, s[24:27], s41 offen {flags} lds']
        return r+publish(static)
    nslot=[f's_add_u32 s35, s35, 8192', f's_and_b32 s35, s35, {RING-1}']
    nslot+= ['s_mov_b32 s33, s32'] if L==1 else ['s_mov_b32 s33, s42','s_mov_b32 s42, s32']
    if tlin: nslot+=[f's_add_u32 s32, s32, {tm[0]}']
    else:
        nslot+=['s_add_u32 s44, s44, 1','s_mov_b32 s32, s43']
        for k in range(4): nslot+=[f's_bitcmp1_b32 s44, {k}', f's_cselect_b32 s36, {tm[k]}, 0', 's_xor_b32 s32, s32, s36']
    lab=[0]
    def space():
        lab[0]+=1
        return [f'L_sp{lab[0]}:', f'ds_read_b128 v[{PA}:{PA+3}], v{FA} offset:16', guard, 's_waitcnt lgkmcnt(0)',
                f'v_min3_u32 v{PA}, v{PA}, v{PA+1}, v{PA+2}', f'v_min_u32 v{PA}, v{PA}, v{PA+3}', f'v_add_u32 v{PA}, {D}, v{PA}',
                f'v_cmp_ge_u32 vcc, s34, v{PA}', f's_cbranch_vccnz L_sp{lab[0]}']
    r=0
    first=True
    while r<L or gi[0]<n:
        for c in range(C):
            emit(grpK(c,True))
            if first:
                first=False
                a(f'''
s_lshl2_add_u32 s36, s18, s19
s_lshl_b32 s36, s36, 10
s_add_u32 s16, s16, s36
s_addc_u32 s17, s17, 0
global_store_dwordx4 v{TM+6}, v[{PL}:{PL+3}], s[16:17] sc1''')
            if r>=L: emit(grpV(c,True))
        emit(nslot); r+=1
    emit(trm(2))
    assert r<=D
    a(f's_mov_b32 s34, {r}')
    if trace: a(f's_mov_b32 s59, {4*r}')
    a('L_ld:')
    emit(tr(0))
    emit(space())
    emit(tr(1))
    a(f'''
s_cmp_lg_u32 s34, {T+L-1-elect_back}
s_cbranch_scc1 L_noel
s_lshl_b32 s36, s18, 2
v_mov_b32 v{PL}, s36
v_mov_b32 v{PL+1}, 1
s_mov_b64 exec, 1
global_atomic_add v{TK}, v{PL}, v{PL+1}, s[14:15] sc0 sc1
s_mov_b64 exec, -1
L_noel:''')
    assert T+L-1-elect_back<T
    for c in range(C):
        emit(grpK(c,False)); emit(grpV(c,False))
    emit(nslot)
    if trace: a('s_add_u32 s59, s59, 4')
    a(f'''
s_add_u32 s34, s34, 1
s_cmp_lt_u32 s34, {T}
s_cbranch_scc1 L_ld''')
    for r in range(L):
        emit(space())
        for c in range(C): emit(grpV(c,False))
        if r<L-1: emit(nslot); a('s_add_u32 s34, s34, 1')
    emit(trm(5))
    NP=PARTS-1
    after_el=(T-(T+L-1-elect_back))*8*C+L*4*C
    drain=list(range(n-1,-1,-1))
    def dr(k,extra=0): return [f's_waitcnt vmcnt({4*k+extra})', f'v_add_u32 v{FV}, 1, v{FV}', f'ds_write_b32 v{FA}, v{FV}']
    cur=n
    while 4*cur>after_el:
        cur=drain.pop(0); emit(dr(cur))
    PB=OM
    a(f'''
v_readfirstlane_b32 s37, v{TK}
s_lshl_b32 s36, s19, 10
s_sub_u32 s56, s16, s36
s_subb_u32 s57, s17, 0''')
    for k in range(1,PARTS):
        a(f's_add_u32 s36, s19, {k}'); a(f's_and_b32 s36, s36, {PARTS-1}'); a('s_lshl_b32 s36, s36, 10')
        a(f'v_add_u32 v{KR+k}, s36, v{TM+6}')
    for k in drain: emit(dr(k))
    emit(trm(6))
    polls=[f'global_load_dwordx4 v[{PB+4*k}:{PB+4*k+3}], v{KR+k}, s[56:57] sc1' for k in range(1,PARTS)]
    def chk():
        r=[f'v_max3_u32 v{TM}, v{PB+4}, v{PB+5}, v{PB+6}']
        for k in range(2,PARTS):
            r+=[f'v_max3_u32 v{TM}, v{TM}, v{PB+4*k}, v{PB+4*k+1}', f'v_max_u32 v{TM}, v{TM}, v{PB+4*k+2}']
        return r+[f'v_cmp_eq_u32 vcc, -1, v{TM}']
    a('s_mov_b32 s38, 0')
    a(f's_cmp_lg_u32 s37, {NP}')
    a('s_cbranch_scc1 L_nop')
    a('L_poll:')
    emit(polls)
    a('s_add_u32 s38, s38, 1')
    a('s_cmp_gt_u32 s38, 0x40000')
    a('s_waitcnt vmcnt(0)')
    a('s_cbranch_scc1 L_ok')
    emit(chk())
    a('s_cbranch_vccnz L_poll')
    a('L_ok:')
    for k in range(2,PARTS):
        for j in range(3): a(f'v_add_f32 v{PB+4+j}, v{PB+4+j}, v{PB+4*k+j}')
    a(f'v_add_f32 v{PB+6}, s55, v{PB+6}')
    a(f'v_lshl_add_u32 v{TM}, v{g_}, 5, v{n_}')
    a(f'v_lshl_add_u32 v{TM}, v{TM}, 1, s39')
    a('L_nop:')
    X=PL
    a(f'v_add_u32 v{TM+3}, 0x10000, v{TM+6}')
    emit(trm(7))
    a('s_barrier')
    emit(trm(8))
    for w in range(C):
        off=w*RING
        a(f'ds_read_b96 v[{VA+4*w}:{VA+4*w+2}], v{TM+6 if off<65536 else TM+3} offset:{off%65536}')
    a(f's_waitcnt lgkmcnt({C-2})')
    for j in range(3): a(f'v_add_f32 v{X+j}, v{VA+j}, v{VA+4+j}')
    for w in range(2,C):
        a(f's_waitcnt lgkmcnt({C-1-w})')
        for j in range(3): a(f'v_add_f32 v{X+j}, v{X+j}, v{VA+4*w+j}')
    a(f'''
s_cmp_eq_u32 s37, {NP}
s_cbranch_scc1 L_comb
v_min_u32 v{X}, -2, v{X}
v_min_u32 v{X+1}, -2, v{X+1}
v_min_u32 v{X+2}, -2, v{X+2}
global_store_dwordx4 v{TM+6}, v[{X}:{X+3}], s[16:17] sc1
s_branch L_fin
L_comb:
v_add_f32 v{X+2}, v{X+2}, v{PB+6}
v_rcp_f32 v{X+2}, v{X+2}
v_add_f32 v{X}, v{X}, v{PB+4}
v_add_f32 v{X+1}, v{X+1}, v{PB+5}
v_mul_f32 v{X}, v{X}, v{X+2}
v_mul_f32 v{X+1}, v{X+1}, v{X+2}
v_cvt_pk_bf16_f32 v{X}, v{X}, v{X+1}
global_store_short v{TM}, v{X}, s[12:13]
global_store_short_d16_hi v{TM}, v{X}, s[12:13] offset:32
s_branch L_fin
''')
    a(f'''
L_cons:
s_barrier
v_lshl_add_u32 v{TM+5}, v{g_}, 4, s39
s_mul_i32 s35, s3, {RING}
v_lshl_add_u32 v{KA}, v{n_}, 8, v{x_}
v_add_u32 v{KA}, {OMO}, v{KA}
v_xor_b32 v{KA+1}, 64, v{KA}
v_xor_b32 v{KA+2}, 0x80, v{KA}
v_xor_b32 v{KA+3}, 0xc0, v{KA}
s_waitcnt lgkmcnt(0)
''')
    for i in range(4):
        a(f'global_load_dwordx4 v[{KR+4*i}:{KR+4*i+3}], v{TM+5}, s[4:5] offset:{i*64}')
    if trace: a(f'v_writelane_b32 v{TB}, s60, 3')
    emit(trm(1))
    a(f'''
v_lshrrev_b32 v{TM+4}, 2, v{LN}
v_and_b32 v{TM+5}, 7, v{TM+4}
v_lshlrev_b32 v{TM+5}, 5, v{TM+5}
v_lshl_add_u32 v{TM+5}, v{TM+4}, 8, v{TM+5}
v_and_b32 v{TM+4}, 3, v{LN}
v_lshl_add_u32 v{TM+5}, v{TM+4}, 3, v{TM+5}
v_add_u32 v{VR}, s35, v{TM+5}
''')
    for b in range(1,8): a(f'v_xor_b32 v{VR+b}, {b*32}, v{VR}')
    a(f'v_lshlrev_b32 v{TM+4}, 2, v{g_}')
    a(f'v_sub_u32 v{TM+4}, v{n_}, v{TM+4}')
    for r in range(4): a(f'v_cmp_eq_u32 s[{40+2*r}:{41+2*r}], {r}, v{TM+4}')
    a(f'''
v_and_b32 v{TM+4}, 1, v{LN}
v_cvt_f32_u32 v{MK}, v{TM+4}
v_sub_f32 v{MK}, 0, v{MK}
v_mov_b32 v{ON}, 0x3f803f80
v_mov_b32 v{ON+1}, 0x3f803f80
s_mov_b32 s48, {SCALE}
s_mov_b32 s50, {LOG2E}
s_mov_b32 s52, 0xffff0000
s_lshl_b32 s36, s3, 2
s_add_u32 s36, s36, {FLG+16}
v_mov_b32 v{PA}, s36
v_mov_b32 v{PG}, 0
v_mov_b32 v{FV}, 0
''')
    for i in range(36): a(f'v_mov_b32 v{VA+i}, 0')
    for i in range(4): a(f'v_mov_b32 v{WD+i}, 0')
    if L==2: a(f'v_mov_b32 v{WA}, 0'); a(f'v_mov_b32 v{WA+1}, 0')
    a(f'v_lshl_add_u32 v{TM+4}, v{LN}, 4, s35')
    for s in range(L):
        for i in range(4): a(f'ds_write_b128 v{TM+4}, v[{VA}:{VA+3}] offset:{s*8192+4096+i*1024}')
    def poll(need):
        lab[0]+=1; k=lab[0]
        return [f'v_cmp_gt_i32 vcc, {need}, v{FV}', f's_cbranch_vccz L_pd{k}', f'L_p{k}:', f'ds_read_b32 v{FV}, v{FA}', guard, 's_waitcnt lgkmcnt(0)',
                f'v_cmp_gt_i32 vcc, {need}, v{FV}', f's_cbranch_vccnz L_p{k}', f'L_pd{k}:']
    def scale(i):
        r=[]
        for j in range(4):
            x=KR+4*i+j; t=TM+2*(j&1)
            r+= [f'v_lshlrev_b32 v{t}, 16, v{x}', f'v_and_b32 v{t+1}, s52, v{x}', f'v_mul_f32 v{t}, s48, v{t}', f'v_mul_f32 v{t+1}, s48, v{t+1}', f'v_cvt_pk_bf16_f32 v{x}, v{t}, v{t+1}']
        return r
    def mf_frag(i):
        kb=f'v[{KR+4*i}:{KR+4*i+3}]'
        r=[f'v_mfma_f32_16x16x32_bf16 v[{GR}:{GR+3}], {kb}, {kb}, '+('0' if i==0 else f'v[{GR}:{GR+3}]')]
        for t in range(4):
            r.append(f'v_mfma_f32_16x16x32_bf16 v[{PJ+4*t}:{PJ+4*t+3}], v[{OM+t*16+i*4}:{OM+t*16+i*4+3}], {kb}, '+('0' if i==0 else f'v[{PJ+4*t}:{PJ+4*t+3}]'))
        return r
    def rnd(tiles): return [f'v_cvt_pk_bf16_f32 v{x}, 0, v{x}' for t in tiles for x in range(PJ+4*t,PJ+4*t+4)]
    def post2(tiles):
        regs=[PJ+4*t+j for t in tiles for j in range(4)]
        r =[f'v_add_f32 v{x}, v{x}, v{SQ}' for x in regs]
        r+=[f'v_cvt_pk_bf16_f32 v{x}, 0, v{x}' for x in regs]
        r+=[f'v_mul_f32 v{x}, s50, v{x}' for x in regs]
        r+=[f'v_exp_f32 v{x}, v{x}' for x in regs]
        return r
    a('s_waitcnt vmcnt(0)')
    emit(trm(2))
    emit(scale(0)+scale(1)+scale(2)+scale(3))
    emit(poll(4))
    emit(trm(3))
    for i in range(4):
        for t in range(4):
            a(f'ds_read_b128 v[{OM+t*16+i*4}:{OM+t*16+i*4+3}], v{KA+i} offset:{t*4096}')
    a(f's_sub_u32 s36, s35, {OMO}')
    for i in range(4): a(f'v_add_u32 v{KA+i}, s36, v{KA+i}')
    for i in range(4):
        a(f's_waitcnt lgkmcnt({12-4*i})')
        emit(mf_frag(i))
    a(f's_add_u32 s33, s3, 5')
    a(f'v_cvt_pk_bf16_f32 v{SQ}, 0, v{GR}')
    a(f'v_mul_f32 v{SQ}, -0.5, v{SQ}')
    def reads(so):
        return [f'ds_read_b128 v[{KR+4*i}:{KR+4*i+3}], v{KA+i} offset:{so}' for i in range(4)]+vreads(so)
    def vreads(so): return [f'ds_read_b64_tr_b16 v[{VF+2*b}:{VF+2*b+1}], v{VR+b} offset:{so+4096}' for b in range(8)]
    emit(rnd(range(4))+post2(range(4)))
    a(f's_mov_b32 s53, {f2u(1e-6)}')
    a(f'v_mov_b32 v{TM}, s53')
    a(f's_mov_b32 s54, {f2u(0.125)}')
    emit(poll('s33'))
    emit(trm(4))
    emit(interleave([f'v_cvt_pk_bf16_f32 v{x}, 0, v{x}' for x in range(PJ,PJ+16)]+[f'v_fma_f32 v{x}, v{x}, s54, v{TM}' for x in range(PJ,PJ+16)], reads(0)))
    for j in range(8): a(f'v_cvt_pk_bf16_f32 v{PQ+j}, v{PJ+2*j}, v{PJ+2*j+1}')
    for j in range(2,6): a(f'v_mov_b32 v{TM+j}, v{ON}')
    a(f'v_mfma_f32_16x16x32_bf16 v[{C0}:{C0+3}], v[{TM+2}:{TM+5}], v[{PQ}:{PQ+3}], 0')
    a(f'v_mfma_f32_16x16x32_bf16 v[{C0}:{C0+3}], v[{TM+2}:{TM+5}], v[{PQ+4}:{PQ+7}], v[{C0}:{C0+3}]')
    a('s_mov_b32 s34, 0')
    a(f's_lshl_b32 s32, s3, 1')
    a(f's_add_u32 s32, s32, {4+4*L+8*(1-L)+2}')
    a(f's_add_u32 s31, s3, {4+4*L+8*(T-L)+1}')
    a(f's_add_u32 s30, s3, 9')
    a(f's_mov_b32 s29, {8192 if U==1 else 16384}')
    for r in range(4): a(f'v_mul_f32 v{C0+r}, s55, v{C0+r}')
    WO = WA if L==1 else WN
    def wfin():
        r=[f'v_cvt_pk_bf16_f32 v{WH+k}, 0, v{WD+k}' for k in range(4)]
        r+=[f'v_fma_f32 v{WH+k}, v{WH+k}, v{MK}, v{WD+k}' for k in range(4)]
        r+=[f'v_cvt_pk_bf16_f32 v{WO}, v{WH}, v{WH+1}', f'v_cvt_pk_bf16_f32 v{WO+1}, v{WH+2}, v{WH+3}']
        return r
    def vmf(wreg=WA, waits=False):
        r=[f'v_mfma_f32_16x16x16_bf16 v[{VA+32}:{VA+35}], v[{wreg}:{wreg+1}], v[{ON}:{ON+1}], v[{VA+32}:{VA+35}]']
        for b in range(8):
            m=f'v_mfma_f32_16x16x16_bf16 v[{VA+4*b}:{VA+4*b+3}], v[{wreg}:{wreg+1}], v[{VF+2*b}:{VF+2*b+1}], v[{VA+4*b}:{VA+4*b+3}]'
            r.append([f's_waitcnt lgkmcnt({7-b})',m] if waits else m)
        return r
    tog=[f'v_xor_b32 v{KA+i}, s29, v{KA+i}' for i in range(4)]+[f'v_xor_b32 v{VR+b}, s29, v{VR+b}' for b in range(8)]
    if nocomp:
        a('L_nc:')
        a(f'v_add_u32 v{PG}, 1, v{PG}')
        a(f's_add_u32 s34, s34, 1')
        a(f's_cmp_eq_u32 s34, {T}')
        a(f's_cselect_b32 s33, s31, s32')
        if L==2: a(f's_max_u32 s33, s33, s30')
        a(f's_add_u32 s32, s32, 8')
        a('s_waitcnt lgkmcnt(0)')
        a(f'ds_write_b32 v{PA}, v{PG}')
        emit(tog); a('s_xor_b32 s29, s29, 16384')
        emit(poll('s33'))
        a(f's_cmp_eq_u32 s34, {T}')
        a('s_cbranch_scc1 L_tail')
        if nocomp==2: emit(reads(0))
        a('s_branch L_nc')
    a('L_loop:')
    for u in range(U):
        lastu = u==U-1
        a(f'v_add_u32 v{PG}, 1, v{PG}')
        a(f's_add_u32 s34, s34, 1')
        a(f's_cmp_eq_u32 s34, {T}')
        a(f's_cselect_b32 s33, s31, s32')
        if L==2:
            a(f's_max_u32 s33, s33, s30')
        a(f's_add_u32 s32, s32, 8')
        a('s_waitcnt lgkmcnt(8)')
        emit(tr(0))
        emit(scale(0))
        a('s_waitcnt lgkmcnt(0)')
        a(f'ds_write_b32 v{PA}, v{PG}')
        emit(interleave(scale(1)+wfin(), mf_frag(0),lead=0.3))
        emit(interleave(scale(2), mf_frag(1),lead=0.5))
        emit(interleave(scale(3), mf_frag(2),lead=0.5))
        emit(tr(1))
        tg = tog if (U==1 or lastu) else []
        vm=vmf()
        emit(interleave(tg[:10], mf_frag(3),lead=1) if tg else vm[:1]+['s_nop 0']+mf_frag(3))
        if not tg: vm=vm[1:]
        ks=[f'v_cndmask_b32 v{SQ}, 0, v{GR}, s[40:41]']
        for r in range(1,4): ks.append(f'v_cndmask_b32 v{SQ}, v{SQ}, v{GR+r}, s[{40+2*r}:{41+2*r}]')
        ks.append(f'v_mov_b32 v{SQ+1}, v{SQ}')
        r1=rnd(range(4))
        ks+=tg[10:] if tg else r1[0:2]
        if not tg: r1=r1[2:]
        ks+=[f'v_permlane32_swap_b32 v{SQ}, v{SQ+1}', f'v_add_f32 v{SQ}, v{SQ}, v{SQ+1}', f'v_mov_b32 v{SQ+1}, v{SQ}']
        ks+=r1[0:2]
        ks+=[f'v_permlane16_swap_b32 v{SQ}, v{SQ+1}', f'v_add_f32 v{SQ}, v{SQ}, v{SQ+1}', f'v_cvt_pk_bf16_f32 v{SQ}, 0, v{SQ}', f'v_mul_f32 v{SQ}, -0.5, v{SQ}']
        ks+=r1[2:]
        p0=post2((0,1)); p1=post2((2,3))
        emit(interleave(ks+p0[:8], vm, lead=0.7))
        if U==1: a('s_xor_b32 s29, s29, 16384')
        emit(p0[8:]+p1[:2])
        if L==2: a(f'v_mov_b32 v{WA}, v{WN}'); a(f'v_mov_b32 v{WA+1}, v{WN+1}')
        for j in range(4): a(f'v_cvt_pk_bf16_f32 v{PJ+j}, v{PJ+2*j}, v{PJ+2*j+1}')
        emit(p1[2:4])
        a(f'v_mfma_f32_16x16x32_bf16 v[{WD}:{WD+3}], v[{PJ}:{PJ+3}], v[{PQ}:{PQ+3}], v[{C0}:{C0+3}]')
        emit(p1[4:])
        a('s_nop 0')
        for j in range(4): a(f'v_cvt_pk_bf16_f32 v{PJ+8+j}, v{PJ+8+2*j}, v{PJ+8+2*j+1}')
        emit(tr(2))
        pl=poll('s33')
        emit(pl[:1])
        a('s_nop 0')
        a(f'v_mfma_f32_16x16x32_bf16 v[{WD}:{WD+3}], v[{PJ+8}:{PJ+11}], v[{PQ+4}:{PQ+7}], v[{WD}:{WD+3}]')
        emit(pl[1:])
        emit(tr(3))
        if trace: a('s_add_u32 s59, s59, 4')
        if lastu:
            a(f's_cmp_eq_u32 s34, {T}')
            a('s_cbranch_scc1 L_tail')
        emit(reads(0 if lastu else (u+1)*8192))
    a('s_branch L_loop')
    a('L_tail:')
    emit(trm(5))
    emit(vreads(0))
    emit(wfin())
    emit(vmf(WA,True))
    if L==2:
        a('s_add_u32 s33, s33, 4')
        emit(poll('s33'))
        emit(vreads(8192))
        emit(vmf(WN,True))
    emit(trm(6))
    a(f'v_lshrrev_b32 v{g_}, 4, v{LN}')
    a(f'v_lshl_add_u32 v{TM+1}, v{LN}, 4, s35')
    for g in range(1,4): a(f'v_cmp_eq_u32 s[{40+2*g}:{41+2*g}], {g}, v{g_}')
    a(f'v_add_f32 v{X+2}, v{VA+32}, v{VA+33}')
    for b in range(8): a(f'v_add_f32 v{VA+4*b}, v{VA+4*b}, v{VA+4*b+1}')
    for g in range(1,4):
        a(f'v_cndmask_b32 v{X}, v{VA if g==1 else X}, v{VA+8*g}, s[{40+2*g}:{41+2*g}]')
        a(f'v_cndmask_b32 v{X+1}, v{VA+4 if g==1 else X+1}, v{VA+8*g+4}, s[{40+2*g}:{41+2*g}]')
    a(f'ds_write_b96 v{TM+1}, v[{X}:{X+2}]')
    a('s_waitcnt lgkmcnt(0)')
    emit(trm(7))
    a('s_barrier')
    emit(trm(8))
    a('L_fin:')
    if trace:
        emit(trm(9))
        a('s_waitcnt vmcnt(0)')
        emit(trm(10))
        a(f'''
v_writelane_b32 v{TB}, s37, {4*11+3}
v_writelane_b32 v{TB}, s38, {4*12+3}
s_load_dwordx2 s[16:17], s[0:1], 48
s_mul_i32 s36, s2, {W}
s_add_u32 s36, s36, s3
s_lshl_b32 s36, s36, 9
s_add_u32 s36, s36, 0x9000000
v_lshl_add_u32 v{TM}, v{LN}, 2, s36
s_waitcnt lgkmcnt(0)
global_store_dword v{TM}, v{TA}, s[16:17]
global_store_dword v{TM}, v{TB}, s[16:17] offset:256
''')
    if stamps:
        a(f'''
s_waitcnt vmcnt(0)
s_memrealtime s[62:63]
s_load_dwordx2 s[16:17], s[0:1], 48
s_mul_i32 s36, s2, {W}
s_add_u32 s36, s36, s3
s_lshl_b32 s36, s36, 4
s_add_u32 s36, s36, 0x8000000
s_waitcnt lgkmcnt(0)
v_mov_b32 v{PL}, s60
v_mov_b32 v{PL+1}, s61
v_mov_b32 v{PL+2}, s62
v_mov_b32 v{PL+3}, s63
v_mov_b32 v{TM}, s36
s_mov_b64 exec, 1
global_store_dwordx4 v{TM}, v[{PL}:{PL+3}], s[16:17]
''')
    a('L_end:')
    a('s_endpgm')
    nn=a.fix()
    txt = HDR + f'; @launch grid=({G},1,1) block=({W*64},1,1) lds={LDS}\n'
    txt += '''.amdgcn_target "amdgcn-amd-amdhsa--gfx950"
.text
.globl standalone__linear_kernel_rfa__decode_kernel
.p2align 8
.type standalone__linear_kernel_rfa__decode_kernel,@function
standalone__linear_kernel_rfa__decode_kernel:
'''
    txt += a.text()
    txt += f'''.section .rodata,"a"
.p2align 6
.amdhsa_kernel standalone__linear_kernel_rfa__decode_kernel
  .amdhsa_next_free_vgpr {NV}
  .amdhsa_next_free_sgpr 96
  .amdhsa_accum_offset {NV}
  .amdhsa_group_segment_fixed_size 0
  .amdhsa_kernarg_size 56
  .amdhsa_user_sgpr_count 2
  .amdhsa_user_sgpr_kernarg_segment_ptr 1
  .amdhsa_system_sgpr_workgroup_id_x 1
.end_amdhsa_kernel
'''
    return txt
if __name__=='__main__':
    cfgs = eval(open(sys.argv[1]).read())
    for n,c in cfgs.items():
        open(n+'.s','w').write(gen(**c))
    print(' '.join(n+'.s' for n in cfgs))
```
